```python
import torch

def _softmax(x, axis=-1):
    return torch.softmax(x, dim=axis)
def _gelu(x):
    return torch.nn.functional.gelu(x, approximate="tanh")
def _silu(x):
    return torch.nn.functional.silu(x)
def _sigmoid(x):
    return torch.sigmoid(x)
def _layernorm(x, axis=-1, eps=1e-5):
    m = x.mean(dim=axis, keepdim=True)
    v = x.var(dim=axis, keepdim=True, unbiased=False)
    return (x - m) / torch.sqrt(v + eps)
def _scatter_add(tgt, idx, src, axis=0):
    return tgt.clone().index_add_(axis, idx, src)
def _segment_sum(src, seg, n):
    out = torch.zeros((n,) + src.shape[1:], dtype=src.dtype)
    return out.index_add_(0, seg, src)
def _pad(x, pw):
    flat = tuple(v for pair in reversed(pw) for v in pair)
    return torch.nn.functional.pad(x, flat)

kernel_name = 'gated_mix__mha_block__dense_activation_silu__prompt'

def setup_inputs():

    _w = (lambda a: (lambda t: t.to(torch.bfloat16) if t.is_floating_point() else t)(torch.as_tensor(a)))
    def _A_setup():
        B, S, D, H = 1, 2048, 512, 32
        return {
            "x": _w((lambda *s: torch.randn(*s, dtype=torch.bfloat16) * 0.05)(B, S, D)),
            "wqkv": _w((lambda *s: torch.randn(*s, dtype=torch.bfloat16) * 0.8)(D, 3 * D)),
            "wo": _w((lambda *s: torch.randn(*s, dtype=torch.bfloat16) * 0.05)(D, D)),
        }
    _A_in = _A_setup()

    def _B_setup():
        B, S, D, F = 1, 2048, 512, 1376
        return {
            "x": _w((lambda *s: torch.randn(*s, dtype=torch.bfloat16) * 0.05)(B, S, D)),
            "w1": _w((lambda *s: torch.randn(*s, dtype=torch.bfloat16) * 3.2)(D, F) * (D ** -0.5)),
            "w2": _w((lambda *s: torch.randn(*s, dtype=torch.bfloat16) * 0.8)(F, D) * (F ** -0.5)),
        }
    _B_in = _B_setup()

    return {
        "A_x": _A_in["x"],
        "A_wqkv": _A_in["wqkv"],
        "A_wo": _A_in["wo"],
        "B_x": _B_in["x"],
        "B_w1": _B_in["w1"],
        "B_w2": _B_in["w2"],
        "gate_w": _w((lambda *s: torch.randn(*s, dtype=torch.bfloat16) * 0.05)(512) * 16.0),
    }

def reference(A_x, A_wqkv, A_wo, B_x, B_w1, B_w2, gate_w):
    def _A_ref(x, wqkv, wo):
        B, S, D = x.shape
        H = 32
        Dh = D // H
        qkv = (lambda x, *d: x.permute(*d))((x @ wqkv).reshape(B, S, 3, H, Dh), 2, 0, 3, 1, 4)
        q, k, v = qkv[0], qkv[1], qkv[2]
        scores = torch.einsum("bhqd,bhkd->bhqk", q, k) * (Dh ** -0.5)
        p = _softmax(scores, axis=-1)
        o = torch.einsum("bhqk,bhkd->bhqd", p, v)
        return (lambda x, *d: x.permute(*d))(o, 0, 2, 1, 3).reshape(B, S, D) @ wo

    def _B_ref(x, w1, w2):
        h = torch.einsum("bsd,df->bsf", x, w1)
        h = _silu(h)
        out = torch.einsum("bsf,fd->bsd", h, w2)
        return out

    x = A_x
    g = _sigmoid((x * gate_w).sum(-1, keepdims=True))
    a = _A_ref(x, A_wqkv, A_wo)
    b = _B_ref(x, B_w1, B_w2)
    return g * a + (1 - g) * b
```

```python
from common import *

def gen_attn(name, KS=1, UNR=8):
    A = Asm()
    NW = 8*KS
    NT = 64//KS
    NC = NT//8
    S = [0, 16]; P = 32; O = 40; Q = 56; K = [60, 64]; V0 = [68, 72]; V1 = [76, 80]
    vKA, vVA, vL16, vT0, vT1, vT2, vT3 = 84, 85, 86, 87, 88, 89, 90
    vG = 92
    NV = 100
    sWS = 8
    sX = 12
    sGW = 16
    sH, sQB, sW, sQT, sKH, sC, sT, sT2, sM = 20, 21, 22, 23, 24, 25, 26, 27, 28
    sMASK = 30
    kernel_header(A, name)
    A("s_cmp_ge_u32 s2, 256", f"s_cbranch_scc1 {name}_end")
    A(f"s_load_dwordx2 s[4:5], s[0:1], {KA_WS}",
      f"s_load_dwordx2 s[6:7], s[0:1], {KA_AX}",
      f"s_load_dwordx2 s[32:33], s[0:1], {KA_GW}")
    A("v_lshrrev_b32 v1, 6, v0",
      f"v_and_b32 v{vL16}, 63, v0",
      f"v_readfirstlane_b32 s{sW}, v1",
      f"v_lshlrev_b32 v{vL16}, 4, v{vL16}")
    A(f"s_and_b32 s{sH}, s2, 7", f"s_lshl_b32 s{sH}, s{sH}, 2",
      f"s_lshr_b32 s{sT}, s2, 6", f"s_add_u32 s{sH}, s{sH}, s{sT}",
      f"s_lshr_b32 s{sQB}, s2, 3", f"s_and_b32 s{sQB}, s{sQB}, 7",
      f"s_and_b32 s{sQT}, s{sW}, 7", f"s_lshr_b32 s{sKH}, s{sW}, 3")
    A("s_waitcnt lgkmcnt(0)")
    srd(A, sWS, 4, WS_END)
    srd(A, sX, 6, 2048*1024)
    srd(A, sGW, 32, 1024)
    A(f"s_lshl_b32 s{sT}, s{sH}, 16",
      f"s_lshl_b32 s{sT2}, s{sQB}, 13", f"s_add_u32 s{sT}, s{sT}, s{sT2}",
      f"s_lshl_b32 s{sT2}, s{sQT}, 10", f"s_add_u32 s{sT}, s{sT}, s{sT2}",
      f"s_add_u32 s{sT}, s{sT}, 0x{WS_Q:x}",
      f"buffer_load_dwordx4 {vr(Q,4)}, v{vL16}, s[{sWS}:{sWS+3}], s{sT} offen")
    A(f"s_lshl_b32 s34, s{sQB}, 8", f"s_lshl_b32 s35, s{sH}, 3", "s_add_u32 s34, s34, s35",
      f"s_add_u32 s34, s34, s{sQT}",
      "s_lshl_b32 s35, s34, 10",
      f"buffer_load_dwordx4 {vr(vG,4)}, v{vL16}, s[{sX}:{sX+3}], s35 offen",
      f"buffer_load_dwordx4 {vr(vG+4,4)}, v{vL16}, s[{sGW}:{sGW+3}], 0 offen")
    A(f"s_mul_i32 s{sT}, s{sKH}, {NT}", f"s_add_u32 s{sT}, s{sT}, s{sQT}",
      f"s_lshl_b32 s{sM}, s{sT}, 10",
      f"s_lshl_b32 s{sT2}, s{sH}, 16", f"s_add_u32 s{sT2}, s{sT2}, s{sM}")
    for c in range(NC):
        A(f"s_add_u32 s36, s{sT2}, 0x{WS_K + c*8192:x}",
          f"s_add_u32 m0, s{sM}, 0x{c*8192:x}",
          f"s_add_u32 s37, s{sT2}, 0x{WS_V + c*8192:x}",
          f"buffer_load_dwordx4 v{vL16}, s[{sWS}:{sWS+3}], s36 offen lds",
          f"s_add_u32 m0, s{sM}, 0x{65536 + c*8192:x}",
          "s_nop 0",
          f"buffer_load_dwordx4 v{vL16}, s[{sWS}:{sWS+3}], s37 offen lds")
    A(f"s_mul_i32 s{sT}, s{sKH}, {NT*1024}",
      f"v_add_u32 v{vKA}, s{sT}, v{vL16}",
      "v_and_b32 v1, 15, v0", "v_lshlrev_b32 v1, 4, v1",
      "v_bfe_u32 v2, v0, 5, 1", "v_lshlrev_b32 v2, 8, v2",
      "v_add_u32 v1, v1, v2",
      f"s_add_u32 s{sT}, s{sT}, 65536",
      f"v_add_u32 v{vVA}, s{sT}, v1")
    A("v_and_b32 v1, 31, v0", "v_mov_b32 v2, 0", "v_mov_b32 v3, 0x3f803f80",
      "v_cmp_eq_u32 vcc, 16, v1", "s_nop 1", "v_cndmask_b32 v2, v2, v3, vcc",
      "v_cmp_eq_u32 vcc, 20, v1", "s_nop 1", "v_cndmask_b32 v2, v2, v3, vcc")
    for b in V0 + V1:
        for i in range(4):
            A(f"v_mov_b32 v{b+i}, v2")
    for i in range(16):
        A(f"v_mov_b32 v{O+i}, 0")
    for i in range(4):
        A(f"v_mov_b32 v{P+4+i}, 0")
    A(f"s_mov_b32 s{sMASK}, 0x0000ffff", f"s_mov_b32 s{sMASK+1}, 0x0000ffff")
    A(f"s_waitcnt vmcnt({2*NC})")
    A(f"v_mov_b32 v{vT0}, 0")
    for i in range(4):
        A(f"v_dot2_f32_bf16 v{vT0}, v{vG+i}, v{vG+4+i}, v{vT0}")
    A("s_nop 1")
    for sh in (1, 2, 4, 8):
        A("s_nop 1", f"v_add_f32_dpp v{vT0}, v{vT0}, v{vT0} row_shr:{sh} row_mask:0xf bank_mask:0xf bound_ctrl:0")
    A("s_nop 1", f"v_add_f32_dpp v{vT0}, v{vT0}, v{vT0} row_bcast:15 row_mask:0xa bank_mask:0xf")
    A("s_nop 1", f"v_add_f32_dpp v{vT0}, v{vT0}, v{vT0} row_bcast:31 row_mask:0xc bank_mask:0xf")
    A(f"v_mul_f32 v{vT0}, 0xbfb8aa3b, v{vT0}",
      f"v_exp_f32 v{vT0}, v{vT0}", "s_nop 0",
      f"v_add_f32 v{vT0}, 1.0, v{vT0}",
      f"v_rcp_f32 v{vT0}, v{vT0}",
      "s_lshl_b32 s34, s34, 2", f"s_add_u32 s34, s34, 0x{WS_G:x}",
      f"v_mov_b32 v{vT1}, 0")
    A(f"s_cmp_lg_u32 s{sKH}, 0", f"s_cbranch_scc1 {name}_nogate",
      "s_mov_b32 exec_lo, 0", "s_mov_b32 exec_hi, 0x80000000",
      f"buffer_store_dword v{vT0}, v{vT1}, s[{sWS}:{sWS+3}], s34 offen",
      "s_mov_b64 exec, -1")
    A.label(f"{name}_nogate")
    A(f"s_waitcnt vmcnt({2*(NC-1)})", "s_barrier")
    A(f"ds_read_b128 {vr(K[0],4)}, v{vKA}",
      f"ds_read_b128 {vr(K[1],4)}, v{vKA} offset:1024",
      f"s_mov_b64 exec, s[{sMASK}:{sMASK+1}]",
      f"ds_read_b128 {vr(V0[0],4)}, v{vVA}",
      "s_mov_b64 exec, -1",
      "s_waitcnt lgkmcnt(0)",
      mfma32(S[0], K[0], Q, "0"),
      f"s_mov_b32 s{sC}, 0")
    A(".p2align 3" if False else "s_nop 0")
    A.label(f"{name}_loop")
    for tt in range(UNR):
        cur, nxt = tt & 1, (tt & 1) ^ 1
        s = S[cur]
        e = lambda i: f"v_exp_f32 v{s+i}, v{s+i}"
        c = lambda i: f"v_cvt_pk_bf16_f32 v{P+i}, v{s+2*i}, v{s+2*i+1}"
        if tt == 6:
            A(f"s_cmp_gt_u32 s{sC}, 1", f"s_cbranch_scc1 {name}_skipb",
              f"s_cmp_eq_u32 s{sC}, 0", f"s_cbranch_scc1 {name}_w1",
              "s_waitcnt vmcnt(0)", f"s_branch {name}_dob")
            A.label(f"{name}_w1")
            A(f"s_waitcnt vmcnt({max(0, 2*(NC-2))})")
            A.label(f"{name}_dob")
            A("s_barrier")
            A.label(f"{name}_skipb")
        A("s_waitcnt lgkmcnt(0)")
        A(mfma32(S[nxt], K[nxt], Q, "0"))
        A(f"ds_read_b128 {vr(K[cur],4)}, v{vKA} offset:{(tt+2)*1024}")
        A(e(0), e(1))
        A(f"s_mov_b64 exec, s[{sMASK}:{sMASK+1}]",
          f"ds_read_b128 {vr(V0[nxt],4)}, v{vVA} offset:{(tt+1)*1024}",
          f"ds_read_b128 {vr(V1[cur],4)}, v{vVA} offset:{tt*1024+512}",
          "s_mov_b64 exec, -1")
        A(e(2), e(3), c(0), c(1))
        A(mfma32(O, V1[nxt], P+4))
        A(e(4), e(5), e(6), e(7), c(2), c(3), e(8), e(9))
        A(mfma32(O, V0[cur], P))
        A(e(10), e(11), c(4), c(5), e(12), e(13), e(14), e(15), c(6), c(7))
    A(f"v_add_u32 v{vKA}, {UNR*1024}, v{vKA}", f"v_add_u32 v{vVA}, {UNR*1024}, v{vVA}",
      f"s_add_u32 s{sC}, s{sC}, 1", f"s_cmp_lt_u32 s{sC}, {NT//UNR}",
      f"s_cbranch_scc1 {name}_loop")
    A("s_waitcnt lgkmcnt(0)", mfma32(O, V1[1], P+4), "s_nop 15", "s_nop 7")
    if KS == 2:
        RED = 133120
        A(f"s_mul_i32 s{sT}, s{sQT}, {9*256}", f"s_add_u32 s{sT}, s{sT}, {RED}",
          "v_and_b32 v1, 63, v0", "v_lshlrev_b32 v1, 2, v1", f"v_add_u32 v1, s{sT}, v1",
          f"s_cmp_eq_u32 s{sKH}, 0", f"s_cbranch_scc1 {name}_red0")
        for i in range(9):
            A(f"ds_write_b32 v1, v{O+i} offset:{i*256}")
        A("s_waitcnt lgkmcnt(0)", "s_barrier", f"s_branch {name}_end")
        A.label(f"{name}_red0")
        A("s_barrier")
        for i in range(9):
            A(f"ds_read_b32 v{S[0]+i}, v1 offset:{i*256}")
        A("s_waitcnt lgkmcnt(0)")
        for i in range(9):
            A(f"v_add_f32 v{O+i}, v{O+i}, v{S[0]+i}")
    A(f"v_rcp_f32 v{vT0}, v{O+8}", "s_nop 0")
    for i in range(8):
        A(f"v_mul_f32 v{O+i}, v{O+i}, v{vT0}")
    for i in range(4):
        A(f"v_cvt_pk_bf16_f32 v{P+i}, v{O+2*i}, v{O+2*i+1}")
    A(f"s_lshl_b32 s{sT}, s{sQB}, 3", f"s_add_u32 s{sT}, s{sT}, s{sQT}", f"s_lshl_b32 s{sT}, s{sT}, 15",
      f"s_lshl_b32 s{sT2}, s{sH}, 10", f"s_add_u32 s{sT}, s{sT}, s{sT2}", f"s_add_u32 s{sT}, s{sT}, 0x{WS_O:x}",
      f"buffer_store_dwordx4 {vr(P,4)}, v{vL16}, s[{sWS}:{sWS+3}], s{sT} offen")
    A.label(f"{name}_end")
    A("s_endpgm")
    lds = 131072 + 2048 + (8*9*256 if KS == 2 else 0)
    return A.text(), descriptor(name, NV), (name, 256, 64*NW, lds)
```

```python
NAME = "gated_mix__mha_block__dense_activation_silu__prompt"

KA_AX, KA_WQKV, KA_WO, KA_BX, KA_W1, KA_W2, KA_GW, KA_OUT, KA_DBG, KA_WS = [8*i for i in range(10)]

WS_Q = 0x000000
WS_K = 0x200000
WS_V = 0x400000
WS_O = 0x600000
WS_G = 0x800000
WS_H = 0x900000
HSTEPS = 88
WS_END = WS_H + 64*HSTEPS*1024

class Asm:
    def __init__(self):
        self.l = []
    def __call__(self, *ss):
        for s in ss:
            self.l.append("    " + s)
    def label(self, s):
        self.l.append(s + ":")
    def raw(self, s):
        self.l.append(s)
    def text(self):
        return "\n".join(self.l) + "\n"

def vr(a, n=1):
    return f"v{a}" if n == 1 else f"v[{a}:{a+n-1}]"
def sr(a, n=1):
    return f"s{a}" if n == 1 else f"s[{a}:{a+n-1}]"

def mfma32(d, a, b, c=None):
    cs = vr(d, 16) if c is None else c
    return f"v_mfma_f32_32x32x16_bf16 {vr(d,16)}, {vr(a,4)}, {vr(b,4)}, {cs}"

def srd(A, s, base_lo, size):
    A(f"s_mov_b32 s{s}, s{base_lo}",
      f"s_mov_b32 s{s+1}, s{base_lo+1}",
      f"s_mov_b32 s{s+2}, 0x{size:x}",
      f"s_mov_b32 s{s+3}, 0x00020000")

def kernel_header(A, name):
    A.raw(f".globl {name}")
    A.raw(".p2align 8")
    A.raw(f".type {name},@function")
    A.label(name)

def descriptor(name, vgpr, sgpr=96, accum=None):
    accum = accum if accum is not None else (vgpr + 3)//4*4
    return f""".p2align 6
.amdhsa_kernel {name}
  .amdhsa_next_free_vgpr {vgpr}
  .amdhsa_next_free_sgpr {sgpr}
  .amdhsa_accum_offset {accum}
  .amdhsa_group_segment_fixed_size 0
  .amdhsa_kernarg_size 80
  .amdhsa_user_sgpr_count 2
  .amdhsa_user_sgpr_kernarg_segment_ptr 1
  .amdhsa_system_sgpr_workgroup_id_x 1
  .amdhsa_float_denorm_mode_32 3
.end_amdhsa_kernel
"""
```

```python
from common import *

SLOT_X, SLOT_W = 16384, 12288
NSLOT = 5
XRING, WRING = 0, NSLOT*SLOT_X
LDS_A = NSLOT*(SLOT_X + SLOT_W)

def gen_gemma(name, mode):
    qkv = mode == 'qkv'
    A = Asm()
    ROWB = 3072 if qkv else 2752
    sX, sWt, sWS = 8, 12, 16
    sW, sTB, sN, sT, sT2, sM = 20, 21, 22, 23, 24, 25
    kernel_header(A, name)
    A("s_cmp_ge_u32 s2, 256", f"s_cbranch_scc1 {name}_end")
    A(f"s_and_b32 s{sTB}, s2, 3", f"s_lshl_b32 s{sTB}, s{sTB}, 2",
      f"s_bfe_u32 s{sT}, s2, 0x20003", f"s_add_u32 s{sTB}, s{sTB}, s{sT}",
      f"s_bfe_u32 s{sN}, s2, 0x10002", f"s_lshl_b32 s{sN}, s{sN}, 3",
      f"s_lshr_b32 s{sT}, s2, 5", f"s_add_u32 s{sN}, s{sN}, s{sT}")
    if not qkv:
        A(f"s_cmp_ge_u32 s{sN}, 15", f"s_cbranch_scc1 {name}_end")
    A(f"s_load_dwordx2 s[4:5], s[0:1], {KA_AX}",
      f"s_load_dwordx2 s[6:7], s[0:1], {KA_WQKV if qkv else KA_W1}",
      f"s_load_dwordx2 s[26:27], s[0:1], {KA_WS}")
    A("v_lshrrev_b32 v1, 6, v0", "v_and_b32 v2, 63, v0",
      f"v_readfirstlane_b32 s{sW}, v1")
    A("s_waitcnt lgkmcnt(0)")
    srd(A, sX, 4, 2048*1024)
    srd(A, sWt, 6, 512*ROWB)
    srd(A, sWS, 26, WS_END)
    A(f"s_cmp_lt_u32 s{sW}, 4", f"s_cbranch_scc1 {name}_cons")
    vX = [10, 11, 12, 13]; vWo = [14, 15, 16]
    A(f"s_sub_u32 s{sW}, s{sW}, 4")
    for j in range(4):
        A("v_lshrrev_b32 v3, 3, v2", f"v_add_u32 v3, {8*j}, v3",
          f"s_lshl_b32 s{sT}, s{sTB}, 7", f"s_lshl_b32 s{sT2}, s{sW}, 5", f"s_add_u32 s{sT}, s{sT}, s{sT2}",
          f"v_add_u32 v3, s{sT}, v3", "v_lshlrev_b32 v3, 10, v3",
          "v_lshrrev_b32 v4, 4, v2", f"v_add_u32 v4, {(4*j) & 7}, v4",
          "v_and_b32 v5, 7, v2", "v_xor_b32 v4, v4, v5", "v_lshlrev_b32 v4, 4, v4",
          f"v_add_u32 v{vX[j]}, v3, v4")
    for j in range(3):
        A(f"s_mul_i32 s{sT}, s{sW}, 192", f"s_add_u32 s{sT}, s{sT}, {64*j}",
          f"v_add_u32 v3, s{sT}, v2",
          "v_mul_u32_u24 v4, 43691, v3", "v_lshrrev_b32 v4, 19, v4",
          "v_mul_u32_u24 v5, 12, v4", "v_sub_u32 v5, v3, v5",
          f"v_mul_u32_u24 v4, {ROWB}, v4")
        if qkv:
            A("v_lshrrev_b32 v6, 2, v5", "v_lshlrev_b32 v6, 10, v6",
              "v_and_b32 v5, 3, v5", "v_lshlrev_b32 v5, 4, v5",
              "v_add_u32 v5, v5, v6", f"s_lshl_b32 s{sT}, s{sN}, 6")
        else:
            A("v_lshlrev_b32 v5, 4, v5", f"s_mul_i32 s{sT}, s{sN}, 192")
        A("v_add_u32 v4, v4, v5", f"v_add_u32 v{vWo[j]}, s{sT}, v4")
    A(f"s_lshl_b32 s30, s{sW}, 12",
      f"s_mul_i32 s31, s{sW}, 3072")
    def issue(st):
        slot = st % NSLOT
        A(f"s_mov_b32 s32, {st*128}", f"s_mov_b32 s33, {st*64*ROWB}")
        for j in range(4):
            A(f"s_add_u32 m0, s30, {XRING + slot*SLOT_X + j*1024}", "s_nop 0",
              f"buffer_load_dwordx4 v{vX[j]}, s[{sX}:{sX+3}], s32 offen lds")
        for j in range(3):
            A(f"s_add_u32 m0, s31, {WRING + slot*SLOT_W + j*1024}", "s_nop 0",
              f"buffer_load_dwordx4 v{vWo[j]}, s[{sWt}:{sWt+3}], s33 offen lds")
    for st in range(NSLOT):
        issue(st)
    issued = NSLOT
    for st in range(8):
        A(f"s_waitcnt vmcnt({7*(issued-1-st)})", "s_barrier")
        if st >= 1 and issued < 8:
            issue(issued); issued += 1
    A("s_endpgm")
    A.label(f"{name}_cons")
    ACC = [0, 16, 32]
    XF = [48, 52]; WF = [56, 68]
    vXA = [80, 81, 82, 83]; vXB = [84, 85, 86, 87]; vWA = 88; vL = 89; vT = 90
    A(f"v_mov_b32 v{vL}, v2")
    A(f"v_and_b32 v3, 31, v{vL}", f"v_lshrrev_b32 v4, 5, v{vL}",
      "v_lshrrev_b32 v5, 1, v3", "v_and_b32 v5, 7, v5",
      f"s_lshl_b32 s{sT}, s{sW}, 5", f"v_add_u32 v3, s{sT}, v3", "v_lshlrev_b32 v3, 7, v3")
    for ks in range(4):
        A(f"v_add_u32 v6, {2*ks}, v4", "v_xor_b32 v6, v6, v5", "v_lshlrev_b32 v6, 4, v6",
          f"v_add_u32 v{vXA[ks]}, v3, v6", f"v_add_u32 v{vXB[ks]}, 0x10000, v{vXA[ks]}")
    A("v_lshlrev_b32 v3, 3, v4", f"v_bfe_u32 v5, v{vL}, 2, 2", "v_add_u32 v3, v3, v5",
      "v_mul_u32_u24 v3, 192, v3",
      f"v_bfe_u32 v5, v{vL}, 4, 1", "v_lshlrev_b32 v5, 5, v5", "v_add_u32 v3, v3, v5",
      f"v_and_b32 v5, 3, v{vL}", "v_lshlrev_b32 v5, 3, v5", "v_add_u32 v3, v3, v5",
      f"v_add_u32 v{vWA}, {WRING}, v3")
    for i in range(48):
        A(f"v_mov_b32 v{i}, 0")
    def reads(n):
        st, ks = divmod(n, 4)
        slot = st % NSLOT
        b = n & 1
        if slot < 4:
            A(f"ds_read_b128 {vr(XF[b],4)}, v{vXA[ks]} offset:{slot*SLOT_X}")
        else:
            A(f"ds_read_b128 {vr(XF[b],4)}, v{vXB[ks]}")
        for blk in range(3):
            for t in range(2):
                off = slot*SLOT_W + (16*ks + 4*t)*192 + blk*64
                A(f"ds_read_b64_tr_b16 {vr(WF[b]+4*blk+2*t,2)}, v{vWA} offset:{off}")
    def mfmas(n):
        b = n & 1
        for blk in range(3):
            if qkv and blk == 2:
                A(mfma32(ACC[blk], XF[b], WF[b]+4*blk))
            else:
                A(mfma32(ACC[blk], WF[b]+4*blk, XF[b]))
    A("s_barrier")
    reads(0)
    for n in range(32):
        if n+1 < 32:
            if (n+1) % 4 == 0:
                A("s_waitcnt lgkmcnt(0)", "s_barrier")
                reads(n+1)
            else:
                reads(n+1)
                A("s_waitcnt lgkmcnt(7)")
        else:
            A("s_waitcnt lgkmcnt(0)")
        mfmas(n)
    A("s_nop 15", "s_nop 7")
    A(f"v_lshlrev_b32 v{vT}, 4, v{vL}")
    A(f"s_lshl_b32 s{sT}, s{sTB}, 2", f"s_add_u32 s{sT}, s{sT}, s{sW}")
    if qkv:
        A("s_mov_b32 s34, 0x3eb8aa3b")
        A(f"s_lshl_b32 s{sT2}, s{sN}, 17", f"s_lshl_b32 s{sM}, s{sT}, 10", f"s_add_u32 s{sT2}, s{sT2}, s{sM}")
        for i in range(16):
            A(f"v_mul_f32 v{i}, s34, v{i}")
        for blk, base in ((0, WS_Q), (1, WS_K)):
            for hd in range(2):
                r = ACC[blk] + 8*hd
                d = 48 + 4*((2*blk+hd) & 1)
                for i in range(4):
                    A(f"v_cvt_pk_bf16_f32 v{d+i}, v{r+2*i}, v{r+2*i+1}")
                A(f"s_add_u32 s35, s{sT2}, 0x{base + hd*65536:x}",
                  f"buffer_store_dwordx4 {vr(d,4)}, v{vT}, s[{sWS}:{sWS+3}], s35 offen", "s_nop 1")
        A(f"v_bfe_u32 v3, v{vL}, 4, 1", "v_lshlrev_b32 v3, 16, v3",
          f"v_lshrrev_b32 v4, 5, v{vL}", "v_lshlrev_b32 v4, 8, v4", "v_add_u32 v3, v3, v4",
          f"v_and_b32 v4, 15, v{vL}", "v_lshlrev_b32 v4, 4, v4", "v_add_u32 v3, v3, v4")
        for j in range(2):
            r = ACC[2] + 8*j
            d = 56 + 4*j
            for i in range(4):
                A(f"v_cvt_pk_bf16_f32 v{d+i}, v{r+2*i}, v{r+2*i+1}")
            A(f"s_add_u32 s35, s{sT2}, 0x{WS_V + j*512:x}",
              f"buffer_store_dwordx4 {vr(d,4)}, v3, s[{sWS}:{sWS+3}], s35 offen")
    else:
        A(f"s_mul_i32 s{sT2}, s{sT}, {HSTEPS*1024}", f"s_mul_i32 s{sM}, s{sN}, 6144",
          f"s_add_u32 s{sT2}, s{sT2}, s{sM}", f"s_add_u32 s{sT2}, s{sT2}, 0x{WS_H:x}",
          "s_mov_b32 s34, 0xbfb8aa3b")
        for blk in range(3):
            if blk == 1:
                A(f"s_cmp_eq_u32 s{sN}, 14", f"s_cbranch_scc1 {name}_pad")
            r = ACC[blk]
            for half in range(2):
                q = r + 8*half
                for i in range(8): A(f"v_mul_f32 v{48+i}, s34, v{q+i}")
                for i in range(8): A(f"v_exp_f32 v{48+i}, v{48+i}")
                for i in range(8): A(f"v_add_f32 v{48+i}, 1.0, v{48+i}")
                for i in range(8): A(f"v_rcp_f32 v{48+i}, v{48+i}")
                for i in range(8): A(f"v_mul_f32 v{q+i}, v{q+i}, v{48+i}")
                d = 56 + 4*half
                for i in range(4):
                    A(f"v_cvt_pk_bf16_f32 v{d+i}, v{q+2*i}, v{q+2*i+1}")
                A(f"s_add_u32 s35, s{sT2}, {(2*blk+half)*1024}",
                  f"buffer_store_dwordx4 {vr(d,4)}, v{vT}, s[{sWS}:{sWS+3}], s35 offen", "s_nop 1")
    if not qkv:
        A("s_endpgm")
        A.label(f"{name}_pad")
        for i in range(4):
            A(f"v_mov_b32 v{48+i}, 0")
        for st in (2, 3):
            A(f"s_add_u32 s35, s{sT2}, {st*1024}",
              f"buffer_store_dwordx4 {vr(48,4)}, v{vT}, s[{sWS}:{sWS+3}], s35 offen")
    A.label(f"{name}_end")
    A("s_endpgm")
    return A.text(), descriptor(name, 96), (name, 256, 512, LDS_A)
```

```python
from common import *

NSB = 8
SLOTB = 16384
LDS_B = NSB*SLOTB
NF2, NWO = 22, 8

def gen_gemmb(name):
    A = Asm()
    sW2, sWo, sWS, sOut = 8, 12, 16, 36
    sW, sTT, sFT, sT, sT2, sS = 20, 21, 22, 23, 24, 25
    kernel_header(A, name)
    A("s_cmp_ge_u32 s2, 256", f"s_cbranch_scc1 {name}_end")
    A(f"s_load_dwordx2 s[4:5], s[0:1], {KA_W2}",
      f"s_load_dwordx2 s[6:7], s[0:1], {KA_WO}",
      f"s_load_dwordx2 s[26:27], s[0:1], {KA_WS}",
      f"s_load_dwordx2 s[28:29], s[0:1], {KA_OUT}")
    A(f"s_and_b32 s{sTT}, s2, 7", f"s_lshl_b32 s{sTT}, s{sTT}, 2",
      f"s_bfe_u32 s{sT}, s2, 0x20003", f"s_add_u32 s{sTT}, s{sTT}, s{sT}",
      f"s_lshr_b32 s{sFT}, s2, 5")
    A("v_lshrrev_b32 v1, 6, v0", "v_and_b32 v2, 63, v0", f"v_readfirstlane_b32 s{sW}, v1")
    A("s_waitcnt lgkmcnt(0)")
    srd(A, sW2, 4, 1376*1024)
    srd(A, sWo, 6, 512*1024)
    srd(A, sWS, 26, WS_END)
    srd(A, sOut, 28, 2048*1024)
    A(f"s_cmp_lt_u32 s{sW}, 4", f"s_cbranch_scc1 {name}_cons")
    vW0, vW1, vB = 10, 11, 12
    A(f"s_sub_u32 s{sW}, s{sW}, 4")
    A("v_lshrrev_b32 v3, 3, v2", f"s_lshl_b32 s{sT}, s{sW}, 4", f"v_add_u32 v3, s{sT}, v3",
      "v_lshlrev_b32 v3, 10, v3",
      "v_bfe_u32 v4, v2, 4, 1", "v_lshlrev_b32 v4, 2, v4", "v_and_b32 v5, 7, v2",
      "v_xor_b32 v4, v4, v5", "v_lshlrev_b32 v4, 4, v4", "v_add_u32 v3, v3, v4",
      f"s_lshl_b32 s{sT}, s{sFT}, 7", f"v_add_u32 v{vW0}, s{sT}, v3",
      f"v_add_u32 v{vW1}, 8192, v{vW0}",
      f"v_lshlrev_b32 v{vB}, 4, v2")
    A(f"s_lshl_b32 s{sT}, s{sTT}, 1", f"s_lshr_b32 s{sT2}, s{sW}, 1", f"s_add_u32 s{sT}, s{sT}, s{sT2}",
      f"s_and_b32 s{sT2}, s{sW}, 1", f"s_lshl_b32 s{sT2}, s{sT2}, 11",
      f"s_mul_i32 s30, s{sT}, {HSTEPS*1024}", f"s_add_u32 s30, s30, s{sT2}", f"s_add_u32 s30, s30, 0x{WS_H:x}",
      f"s_lshl_b32 s31, s{sT}, 15", f"s_add_u32 s31, s31, s{sT2}", f"s_add_u32 s31, s31, 0x{WS_O:x}",
      f"s_lshl_b32 s32, s{sW}, 11",
      f"s_lshl_b32 s33, s{sW}, 11", "s_add_u32 s33, s33, 8192")
    sI, sA, sBo, sL = 40, 41, 42, 43
    def issue(tag):
        A(f"s_and_b32 s{sL}, s{sI}, {NSB-1}", f"s_lshl_b32 s{sL}, s{sL}, 14",
          f"s_cmp_lt_u32 s{sI}, {NF2}", f"s_cbranch_scc0 {name}_i{tag}_wo")
        def four(srdW):
            A(f"s_add_u32 m0, s{sL}, s32", f"s_add_u32 s44, s{sBo}, 1024",
              f"buffer_load_dwordx4 v{vW0}, s[{srdW}:{srdW+3}], s{sA} offen lds",
              "s_add_u32 m0, m0, 1024", "s_nop 0",
              f"buffer_load_dwordx4 v{vW1}, s[{srdW}:{srdW+3}], s{sA} offen lds",
              f"s_add_u32 m0, s{sL}, s33", "s_nop 0",
              f"buffer_load_dwordx4 v{vB}, s[{sWS}:{sWS+3}], s{sBo} offen lds",
              "s_add_u32 m0, m0, 1024", "s_nop 0",
              f"buffer_load_dwordx4 v{vB}, s[{sWS}:{sWS+3}], s44 offen lds")
        A(f"s_lshl_b32 s{sA}, s{sI}, 16", f"s_lshl_b32 s{sBo}, s{sI}, 12", f"s_add_u32 s{sBo}, s{sBo}, s30")
        four(sW2)
        A(f"s_branch {name}_i{tag}_done")
        A.label(f"{name}_i{tag}_wo")
        A(f"s_sub_u32 s45, s{sI}, {NF2}",
          f"s_lshl_b32 s{sA}, s45, 16", f"s_lshl_b32 s{sBo}, s45, 12", f"s_add_u32 s{sBo}, s{sBo}, s31",
          f"s_cmp_lt_u32 s45, {NWO}", f"s_cselect_b32 s{sBo}, s{sBo}, 0x40000000")
        four(sWo)
        A.label(f"{name}_i{tag}_done")
        A(f"s_add_u32 s{sI}, s{sI}, 1")
    A(f"s_mov_b32 s{sI}, 0")
    A.label(f"{name}_pro")
    issue("a")
    A(f"s_cmp_lt_u32 s{sI}, {NSB-1}", f"s_cbranch_scc1 {name}_pro")
    A(f"s_mov_b32 s{sS}, 0")
    A.label(f"{name}_lloop")
    A(f"s_waitcnt vmcnt({4*(NSB-2)})", "s_barrier")
    issue("b")
    A(f"s_add_u32 s{sS}, s{sS}, 1", f"s_cmp_lt_u32 s{sS}, {NF2+NWO+1}", f"s_cbranch_scc1 {name}_lloop")
    A("s_endpgm")
    A.label(f"{name}_cons")
    ACCB, ACCA = 0, 16
    FR = [32, 64]
    vWA, vBA, vL, vG, vT = 96, 97, 98, 99, 100
    A(f"v_mov_b32 v{vL}, v2")
    A(f"s_lshl_b32 s{sT}, s{sTT}, 1", f"s_lshr_b32 s{sT2}, s{sW}, 1", f"s_add_u32 s{sT}, s{sT}, s{sT2}",
      f"s_lshl_b32 s46, s{sT}, 5",
      f"v_and_b32 v3, 31, v{vL}", "v_add_u32 v3, s46, v3",
      f"v_lshlrev_b32 v{vT}, 10, v3",
      "v_lshlrev_b32 v3, 2, v3", f"v_add_u32 v3, 0x{WS_G:x}, v3",
      f"buffer_load_dword v{vG}, v3, s[{sWS}:{sWS+3}], 0 offen")
    A(f"v_lshrrev_b32 v4, 5, v{vL}", "v_lshlrev_b32 v4, 2, v4", f"v_bfe_u32 v5, v{vL}, 2, 2",
      "v_add_u32 v4, v4, v5", "v_lshlrev_b32 v4, 7, v4",
      f"s_and_b32 s{sT2}, s{sW}, 1",
      f"v_bfe_u32 v5, v{vL}, 3, 1", f"v_xor_b32 v5, s{sT2}, v5", "v_lshlrev_b32 v5, 6, v5", "v_add_u32 v4, v4, v5",
      f"v_bfe_u32 v5, v{vL}, 4, 1", "v_lshlrev_b32 v5, 5, v5", "v_add_u32 v4, v4, v5",
      f"v_and_b32 v5, 3, v{vL}", "v_lshlrev_b32 v5, 3, v5", f"v_add_u32 v{vWA}, v4, v5")
    A(f"s_lshr_b32 s{sT2}, s{sW}, 1", f"s_lshl_b32 s{sT2}, s{sT2}, 12", f"s_add_u32 s{sT2}, s{sT2}, 8192",
      f"v_lshlrev_b32 v4, 4, v{vL}", f"v_add_u32 v{vBA}, s{sT2}, v4")
    for i in range(32):
        A(f"v_mov_b32 v{i}, 0")
    def reads(b):
        for ks in range(4):
            for t in range(2):
                A(f"ds_read_b64_tr_b16 {vr(FR[b]+8*ks+2*t,2)}, v{vWA} offset:{(16*ks+8*t)*128}")
            A(f"ds_read_b128 {vr(FR[b]+8*ks+4,4)}, v{vBA} offset:{ks*1024}")
    def advance():
        A(f"v_add_u32 v{vWA}, {SLOTB}, v{vWA}", f"v_add_u32 v{vBA}, {SLOTB}, v{vBA}",
          f"v_and_b32 v{vWA}, {LDS_B-1}, v{vWA}", f"v_and_b32 v{vBA}, {LDS_B-1}, v{vBA}")
    def body(b, acc):
        A("s_waitcnt lgkmcnt(0)", "s_barrier")
        reads(b ^ 1)
        advance()
        for ks in range(4):
            A(mfma32(acc, FR[b]+8*ks, FR[b]+8*ks+4))
    A("s_barrier")
    reads(0)
    advance()
    for tag, n, acc in (("f", NF2, ACCB), ("o", NWO, ACCA)):
        A(f"s_mov_b32 s{sS}, 0")
        A.label(f"{name}_c{tag}")
        body(0, acc); body(1, acc)
        A(f"s_add_u32 s{sS}, s{sS}, 2", f"s_cmp_lt_u32 s{sS}, {n}", f"s_cbranch_scc1 {name}_c{tag}")
    A("s_waitcnt vmcnt(0) lgkmcnt(0)", "s_nop 15", "s_nop 7")
    for i in range(16):
        A(f"v_sub_f32 v{ACCA+i}, v{ACCA+i}, v{ACCB+i}")
    for i in range(16):
        A(f"v_fma_f32 v{ACCB+i}, v{vG}, v{ACCA+i}, v{ACCB+i}")
    for i in range(8):
        A(f"v_cvt_pk_bf16_f32 v{32+i}, v{ACCB+2*i}, v{ACCB+2*i+1}")
    A(f"s_lshl_b32 s{sT}, s{sFT}, 7", f"s_and_b32 s{sT2}, s{sW}, 1", f"s_lshl_b32 s{sT2}, s{sT2}, 6",
      f"s_add_u32 s{sT}, s{sT}, s{sT2}",
      f"v_lshrrev_b32 v4, 5, v{vL}", "v_lshlrev_b32 v4, 4, v4", f"v_add_u32 v{vT}, v{vT}, v4")
    for p in range(2):
        r = 32 + 4*p
        A("s_nop 1", f"v_permlane32_swap_b32 v{r}, v{r+2}", f"v_permlane32_swap_b32 v{r+1}, v{r+3}")
    for p in range(2):
        r = 32 + 4*p
        A(f"buffer_store_dwordx4 {vr(r,4)}, v{vT}, s[{sOut}:{sOut+3}], s{sT} offen offset:{32*p}")
    A.label(f"{name}_end")
    A("s_endpgm")
    return A.text(), descriptor(name, 104), (name, 256, 512, LDS_B)
```

```python
import sys
from common import *
from attn import gen_attn
from gemma import gen_gemma
from gemmb import gen_gemmb

HEADER = """; Kernarg layout for this problem (80 bytes, ptrs only, base s[0:1]):
"""
def assemble(parts):
    out = [HEADER]
    for _, _, (n, g, b, lds) in parts:
        out.append(f"; @launch kernel={n} grid=({g},1,1) block=({b},1,1) lds={lds}\n")
    out.append('.amdgcn_target "amdgcn-amd-amdhsa--gfx950"\n.text\n')
    seen = set()
    for code, _, (n, *_r) in parts:
        if n not in seen: out.append(code)
        seen.add(n)
    out.append('.section .rodata,"a"\n')
    seen = set()
    for _, d, (n, *_r) in parts:
        if n not in seen: out.append(d)
        seen.add(n)
    return "".join(out)

if __name__ == "__main__":
    ks = int(sys.argv[2]) if len(sys.argv) > 2 else 1
    parts = [gen_gemma("qkv_kernel", "qkv"), gen_gemma("ffn1_kernel", "ffn1"),
             gen_attn("attn_kernel", KS=ks), gen_gemmb("outp_kernel")]
    open(sys.argv[1], "w").write(assemble(parts))
```

```python
NAME = "gated_mix__mha_block__dense_activation_silu__prompt"

KA_AX, KA_WQKV, KA_WO, KA_BX, KA_W1, KA_W2, KA_GW, KA_OUT, KA_DBG, KA_WS = [8*i for i in range(10)]

WS_Q = 0x000000
WS_K = 0x200000
WS_V = 0x400000
WS_O = 0x600000
WS_G = 0x800000
WS_H = 0x900000
HSTEPS = 88
WS_END = WS_H + 64*HSTEPS*1024


class Asm:
    def __init__(self):
        self.l = []
    def __call__(self, *ss):
        for s in ss:
            self.l.append("    " + s)
    def label(self, s):
        self.l.append(s + ":")
    def raw(self, s):
        self.l.append(s)
    def text(self):
        return "\n".join(self.l) + "\n"

def vr(a, n=1):
    return f"v{a}" if n == 1 else f"v[{a}:{a+n-1}]"
def sr(a, n=1):
    return f"s{a}" if n == 1 else f"s[{a}:{a+n-1}]"

def mfma32(d, a, b, c=None):
    cs = vr(d, 16) if c is None else c
    return f"v_mfma_f32_32x32x16_bf16 {vr(d,16)}, {vr(a,4)}, {vr(b,4)}, {cs}"

def srd(A, s, base_lo, size):
    A(f"s_mov_b32 s{s}, s{base_lo}",
      f"s_mov_b32 s{s+1}, s{base_lo+1}",
      f"s_mov_b32 s{s+2}, 0x{size:x}",
      f"s_mov_b32 s{s+3}, 0x00020000")

def kernel_header(A, name):
    A.raw(f".globl {name}")
    A.raw(".p2align 8")
    A.raw(f".type {name},@function")
    A.label(name)

def descriptor(name, vgpr, sgpr=102, accum=None):
    accum = accum if accum is not None else (vgpr + 3)//4*4
    return f""".p2align 6
.amdhsa_kernel {name}
  .amdhsa_next_free_vgpr {vgpr}
  .amdhsa_next_free_sgpr {sgpr}
  .amdhsa_accum_offset {accum}
  .amdhsa_group_segment_fixed_size 0
  .amdhsa_kernarg_size 80
  .amdhsa_user_sgpr_count 2
  .amdhsa_user_sgpr_kernarg_segment_ptr 1
  .amdhsa_system_sgpr_workgroup_id_x 1
  .amdhsa_float_denorm_mode_32 3
.end_amdhsa_kernel
"""

import os
STAMPS = os.environ.get("STAMPS", "0") == "1"
WS_DBG = 0x1000000
ST0 = 64
def stamp(A, i):
    if STAMPS:
        A(f"s_memtime s[{ST0+4*i}:{ST0+4*i+1}]", f"s_memrealtime s[{ST0+4*i+2}:{ST0+4*i+3}]")
def stamp_init(A):
    if STAMPS:
        A("v_lshrrev_b32 v1, 6, v0", "s_nop 0", "v_readfirstlane_b32 s97, v1", "s_mov_b32 s96, s2")
        for i in range(8):
            for j in range(4):
                A(f"s_mov_b32 s{ST0+4*i+j}, 0")
def stamp_flush(A, kidx, tmpv=1):
    if STAMPS:
        A("s_waitcnt lgkmcnt(0)",
          f"s_load_dwordx2 s[98:99], s[0:1], {KA_WS}", "s_waitcnt lgkmcnt(0)",
          "s_mov_b32 s100, s98", "s_mov_b32 s101, s99")
        A("s_mov_b32 s4, s100", "s_mov_b32 s5, s101", "s_mov_b32 s6, 0x2000000", "s_mov_b32 s7, 0x00020000")
        A("s_lshl_b32 s98, s96, 4", "s_add_u32 s98, s98, s97", "s_lshl_b32 s98, s98, 6",
          f"s_add_u32 s98, s98, 0x{WS_DBG + kidx*256*16*64:x}",
          "s_mov_b64 exec, 1", f"v_mov_b32 v{tmpv}, 0")
        for i in range(8):
            A(f"v_mov_b32 v{tmpv+1}, s{ST0+4*i}", f"v_mov_b32 v{tmpv+2}, s{ST0+4*i+2}",
              f"buffer_store_dwordx2 v[{tmpv+1}:{tmpv+2}], v{tmpv}, s[4:7], s98 offen offset:{8*i}", "s_nop 1")
```

```python
from common import *
import os

KN = NAME + "_kernel"

WS_FLAG = 0xF00000
WS_EPOCH = WS_FLAG
WS_QF = WS_FLAG + 0x1000
WS_FF = WS_FLAG + 0x4000
WS_OF = WS_FLAG + 0x8000
WS_SIZE = WS_FLAG + 0x10000

SLOT_X, SLOT_W, NSLOT = 16384, 12288, 5
XRING, WRING = 0, NSLOT*SLOT_X
LDS_K, LDS_V, LDS_Q = 0, 65536, 131072
SLOTB, NSB = 16384, 10
LDS_TOTAL = 163840
NF2, NWO = 22, 8

sX, sWQ, sW1, sW2, sWO, sWS, sOUT, sGW = 8, 12, 16, 20, 24, 28, 32, 36
sW, sTB, sN, sH, sQB, sTT, sFT, sTAG0, sTAG1 = 40, 41, 42, 43, 44, 45, 46, 47, 48
sT, sT2, sT3, sT4, sC, sI, sA, sBo, sL = 49, 50, 51, 52, 53, 54, 55, 56, 57
sM0, sM1 = 58, 59
sMASK = 60
sSPIN = 62
sE = 63
vLANE, vL16 = 250, 251
vPOLL, vPA = 244, 246
vFL = 248
vZ = 247
vW0, vW1 = 242, 243

SPIN_LIMIT = 1 << 20

vST = 252
def stamp_init(A):
    if STAMPS: A(f"v_mov_b32 v{vST}, 0")
def stamp(A, i):
    if STAMPS:
        A("s_memtime s[64:65]", "s_memrealtime s[66:67]", "s_waitcnt lgkmcnt(0)",
          f"v_writelane_b32 v{vST}, s64, {2*i}", f"v_writelane_b32 v{vST}, s66, {2*i+1}")
def stamp_flush(A, k):
    if STAMPS:
        A("s_mov_b64 exec, -1", f"s_lshl_b32 s64, s2, 3", f"s_add_u32 s64, s64, s{sW}", "s_lshl_b32 s64, s64, 8",
          f"s_add_u32 s64, s64, 0x{WS_DBG:x}", f"v_lshlrev_b32 v253, 2, v{vLANE}",
          f"s_mov_b32 s{sWS+2}, 0x2000000",
          f"buffer_store_dword v{vST}, v253, {S4(sWS)}, s64 offen")

class G:
    def __init__(self, opt=()):
        self.A = Asm()
        self.opt = set(opt)
        self.uid = 0
    def lab(self, s):
        self.uid += 1
        return f"L{self.uid}_{s}"

def S4(b): return f"s[{b}:{b+3}]"

def flag_store(g, soff):
    A = g.A
    A("s_mov_b64 exec, 1",
      f"buffer_store_dwordx2 v[{vFL}:{vFL+1}], v{vZ}, {S4(sWS)}, s{soff} offen sc1",
      "s_mov_b64 exec, -1")

def poll_issue(g, soff):
    g.A(f"buffer_load_dwordx2 v[{vPOLL}:{vPOLL+1}], v{vPA}, {S4(sWS)}, s{soff} offen sc1")

def poll_check(g, soff, ignore=None):
    A = g.A
    top, done = g.lab("spin"), g.lab("matched")
    A(f"s_mov_b32 s{sSPIN}, 0")
    A.label(top)
    A("s_waitcnt vmcnt(0)",
      f"v_cmp_eq_u32 vcc, s{sTAG0}, v{vPOLL}",
      f"v_cmp_eq_u32 s[4:5], s{sTAG1}, v{vPOLL+1}",
      "s_nop 1",
      "s_and_b64 vcc, vcc, s[4:5]")
    if ignore is not None:
        A(f"s_or_b64 vcc, vcc, s[{ignore}:{ignore+1}]")
    A("s_cmp_eq_u64 vcc, -1", f"s_cbranch_scc1 {done}",
      f"s_add_u32 s{sSPIN}, s{sSPIN}, 1", f"s_cmp_ge_u32 s{sSPIN}, {SPIN_LIMIT}", f"s_cbranch_scc1 {done}",
      "s_sleep 2")
    poll_issue(g, soff)
    A(f"s_branch {top}")
    A.label(done)

def prologue(g):
    A = g.A
    A("s_cmp_ge_u32 s2, 256", f"s_cbranch_scc1 {KN}_exit")
    stamp_init(A); stamp(A, 0)
    for reg, off in ((sX, KA_AX), (sWQ, KA_WQKV), (sW1, KA_W1), (sWS, KA_WS), (sW2, KA_W2), (sWO, KA_WO), (sOUT, KA_OUT), (sGW, KA_GW)):
        A(f"s_load_dwordx2 s[{reg}:{reg+1}], s[0:1], {off}")
    A("v_lshrrev_b32 v1, 6, v0", f"v_and_b32 v{vLANE}, 63, v0",
      f"v_readfirstlane_b32 s{sW}, v1", f"v_lshlrev_b32 v{vL16}, 4, v{vLANE}",
      f"v_lshlrev_b32 v{vPA}, 3, v{vLANE}", f"v_mov_b32 v{vW0}, 0", f"v_mov_b32 v{vW1}, 0")
    A(f"s_and_b32 s{sTB}, s2, 3", f"s_lshl_b32 s{sTB}, s{sTB}, 2",
      f"s_bfe_u32 s{sT}, s2, 0x20003", f"s_add_u32 s{sTB}, s{sTB}, s{sT}",
      f"s_bfe_u32 s{sN}, s2, 0x10002", f"s_lshl_b32 s{sN}, s{sN}, 3",
      f"s_lshr_b32 s{sFT}, s2, 5", f"s_add_u32 s{sN}, s{sN}, s{sFT}",
      f"s_and_b32 s{sT2}, s2, 7", f"s_lshl_b32 s{sT2}, s{sT2}, 2",
      f"s_add_u32 s{sTT}, s{sT2}, s{sT}",
      f"s_lshr_b32 s{sH}, s2, 6", f"s_add_u32 s{sH}, s{sH}, s{sT2}",
      f"s_bfe_u32 s{sQB}, s2, 0x30003")
    for reg, size in ((sX, 2048*1024), (sWQ, 512*3072), (sW1, 512*2752), (sWS, WS_SIZE), (sW2, 1376*1024),
                      (sWO, 512*1024), (sOUT, 2048*1024), (sGW, 1024)):
        A(f"s_mov_b32 s{reg+2}, 0x{size:x}", f"s_mov_b32 s{reg+3}, 0x00020000")
    A("s_waitcnt lgkmcnt(0)")
    A(f"s_add_u32 s4, s{sWS}, 0x{WS_EPOCH:x}", f"s_addc_u32 s5, s{sWS+1}, 0",
      f"s_load_dwordx2 s[{sM0}:{sM1}], s[4:5], 0")
    A(f"s_cmp_lt_u32 s{sW}, 4", f"s_cbranch_scc1 {KN}_cons")

def take_tag(g):
    A = g.A
    A("s_waitcnt lgkmcnt(0)", f"s_add_u32 s{sTAG0}, s{sM0}, 1", f"s_mov_b32 s{sTAG1}, s{sM1}",
      f"v_mov_b32 v{vFL}, s{sTAG0}", f"v_mov_b32 v{vFL+1}, s{sTAG1}", f"v_mov_b32 v{vZ}, 0")

def loader_qf(g):
    A = g.A
    vX = [10, 11, 12, 13]; vWq = [14, 15, 16]; vWf = [17, 18, 19]
    lw = sE
    A(f"s_sub_u32 s{lw}, s{sW}, 4")
    for j in range(4):
        if j == 0:
            A(f"v_lshrrev_b32 v3, 3, v{vLANE}",
              f"s_lshl_b32 s{sT}, s{sTB}, 7", f"s_lshl_b32 s{sT2}, s{lw}, 5", f"s_add_u32 s{sT}, s{sT}, s{sT2}",
              f"v_add_u32 v3, s{sT}, v3", "v_lshlrev_b32 v3, 10, v3",
              f"v_lshrrev_b32 v4, 4, v{vLANE}", f"v_and_b32 v5, 7, v{vLANE}",
              "v_xor_b32 v6, v4, v5", "v_lshlrev_b32 v6, 4, v6",
              "v_xor_b32 v7, 64, v6",
              f"v_add_u32 v{vX[0]}, v3, v6", "v_add_u32 v7, v3, v7",
              f"v_add_u32 v{vX[1]}, 0x2000, v7", f"v_add_u32 v{vX[2]}, 0x4000, v{vX[0]}", f"v_add_u32 v{vX[3]}, 0x6000, v7")
    for j in range(3):
        A(f"s_mul_i32 s{sT}, s{lw}, 192", f"s_add_u32 s{sT}, s{sT}, {64*j}",
          f"v_add_u32 v3, s{sT}, v{vLANE}",
          "v_mul_u32_u24 v4, 43691, v3", "v_lshrrev_b32 v4, 19, v4",
          "v_mul_u32_u24 v5, 12, v4", "v_sub_u32 v5, v3, v5",
          "v_mul_u32_u24 v8, 3072, v4",
          "v_lshrrev_b32 v6, 2, v5", "v_lshlrev_b32 v6, 10, v6",
          "v_and_b32 v7, 3, v5", "v_lshlrev_b32 v7, 4, v7", "v_add_u32 v6, v6, v7",
          f"s_lshl_b32 s{sT}, s{sN}, 6", "v_add_u32 v8, v8, v6", f"v_add_u32 v{vWq[j]}, s{sT}, v8",
          "v_mul_u32_u24 v8, 2752, v4", "v_lshlrev_b32 v5, 4, v5", "v_add_u32 v8, v8, v5",
          f"s_mul_i32 s{sT}, s{sN}, 192", f"v_add_u32 v{vWf[j]}, s{sT}, v8")
    A(f"s_lshl_b32 s{sM0+0}, s{lw}, 12" if False else f"s_lshl_b32 s{sA}, s{lw}, 12",
      f"s_mul_i32 s{sBo}, s{lw}, 3072")
    def issue(st):
        slot = st % NSLOT
        q = st < 8
        ks = st & 7
        A(f"s_mov_b32 s{sT}, {ks*128}", f"s_mov_b32 s{sT2}, {ks*64*(3072 if q else 2752)}")
        for j in range(4):
            A(f"s_add_u32 m0, s{sA}, {XRING + slot*SLOT_X + j*1024}", "s_nop 0",
              f"buffer_load_dwordx4 v{vX[j]}, {S4(sX)}, s{sT} offen lds")
        for j in range(3):
            A(f"s_add_u32 m0, s{sBo}, {WRING + slot*SLOT_W + j*1024}", "s_nop 0",
              f"buffer_load_dwordx4 v{(vWq if q else vWf)[j]}, {S4(sWQ if q else sW1)}, s{sT2} offen lds")
    issue(0); issue(1)
    take_tag(g)
    stamp(A, 1)
    issued = 2
    for j in range(16):
        A(f"s_waitcnt vmcnt({7*(issued-1-j)})", "s_barrier")
        if j == 0:
            stamp(A, 2)
            issue(2); issue(3); issued = 4
        elif j + 3 <= 15:
            issue(j+3); issued = j+4
    A("s_barrier")
    stamp(A, 3)

def loader_kv(g):
    A = g.A
    lw = sE
    vG = 20
    for i in range(2):
        A(f"s_lshl_b32 s{sT}, s{sQB}, 3", f"s_add_u32 s{sT}, s{sT}, s{lw}", f"s_add_u32 s{sT}, s{sT}, {4*i}",
          f"s_lshl_b32 s{sT}, s{sT}, 5", f"s_add_u32 s{sT}, s{sT}, s{sH}",
          f"s_mov_b32 s{sI+i}, s{sT}", f"s_lshl_b32 s{sT}, s{sT}, 10",
          f"buffer_load_dwordx4 {vr(vG+4*i,4)}, v{vL16}, {S4(sX)}, s{sT} offen")
    A(f"buffer_load_dwordx4 {vr(vG+8,4)}, v{vL16}, {S4(sGW)}, 0 offen")
    A(f"s_lshl_b32 s{sT2}, s{sH}, 16")
    for i in range(2):
        A(f"s_lshl_b32 s{sT}, s{sQB}, 13", f"s_add_u32 s{sT}, s{sT}, s{sT2}",
          f"s_lshl_b32 s{sT3}, s{lw}, 11", f"s_add_u32 s{sT}, s{sT}, s{sT3}",
          f"s_add_u32 s{sT}, s{sT}, 0x{WS_Q + i*1024:x}",
          f"s_add_u32 m0, s{sT3}, {LDS_Q + i*1024}", "s_nop 0",
          f"buffer_load_dwordx4 v{vL16}, {S4(sWS)}, s{sT} offen sc1 lds")
    A(f"s_lshl_b32 s{sT3}, s{lw}, 10", f"s_add_u32 s{sT2}, s{sT2}, s{sT3}")
    for c in range(16):
        A(f"s_add_u32 s{sT}, s{sT2}, 0x{WS_K + c*4096:x}",
          f"s_add_u32 m0, s{sT3}, {LDS_K + c*4096}",
          f"s_add_u32 s{sT4}, s{sT2}, 0x{WS_V + c*4096:x}",
          f"buffer_load_dwordx4 v{vL16}, {S4(sWS)}, s{sT} offen sc1 lds",
          f"s_add_u32 m0, s{sT3}, {LDS_V + c*4096}", "s_nop 0",
          f"buffer_load_dwordx4 v{vL16}, {S4(sWS)}, s{sT4} offen sc1 lds")
    stamp(A, 4)
    A("s_waitcnt vmcnt(34)")
    for i in range(2):
        t = 32 + i
        A(f"v_mov_b32 v{t}, 0")
        for k in range(4):
            A(f"v_dot2_f32_bf16 v{t}, v{vG+4*i+k}, v{vG+8+k}, v{t}")
    A("s_nop 2")
    for mod in ("row_shr:1 row_mask:0xf bank_mask:0xf bound_ctrl:0", "row_shr:2 row_mask:0xf bank_mask:0xf bound_ctrl:0",
                "row_shr:4 row_mask:0xf bank_mask:0xf bound_ctrl:0", "row_shr:8 row_mask:0xf bank_mask:0xf bound_ctrl:0",
                "row_bcast:15 row_mask:0xa bank_mask:0xf", "row_bcast:31 row_mask:0xc bank_mask:0xf"):
        A("s_nop 0")
        for i in range(2):
            A(f"v_add_f32_dpp v{32+i}, v{32+i}, v{32+i} {mod}")
    for i in range(2): A(f"v_mul_f32 v{32+i}, 0xbfb8aa3b, v{32+i}")
    for i in range(2): A(f"v_exp_f32 v{32+i}, v{32+i}")
    A("s_nop 0")
    for i in range(2): A(f"v_add_f32 v{32+i}, 1.0, v{32+i}")
    for i in range(2): A(f"v_rcp_f32 v{32+i}, v{32+i}")
    A("s_mov_b32 exec_lo, 0", "s_mov_b32 exec_hi, 0x80000000")
    for i in range(2):
        A(f"s_lshl_b32 s{sT}, s{sI+i}, 2", f"s_add_u32 s{sT}, s{sT}, 0x{WS_G:x}",
          f"buffer_store_dword v{32+i}, v{vZ}, {S4(sWS)}, s{sT} offen sc1")
    A("s_mov_b64 exec, -1")
    stamp(A, 5)

def consumer_qf(g):
    A = g.A
    ACC = [0, 16, 32]
    XF = [48, 52]; WF = [56, 68]
    vXA = [80, 81, 82, 83]; vXB = [84, 85, 86, 87]; vWA = 88
    A(f"v_and_b32 v3, 31, v{vLANE}", f"v_lshrrev_b32 v4, 5, v{vLANE}",
      "v_lshrrev_b32 v5, 1, v3", "v_and_b32 v5, 7, v5",
      f"s_lshl_b32 s{sT}, s{sW}, 5", f"v_add_u32 v3, s{sT}, v3", "v_lshlrev_b32 v3, 7, v3")
    for ks in range(4):
        A(f"v_add_u32 v6, {2*ks}, v4", "v_xor_b32 v6, v6, v5", "v_lshlrev_b32 v6, 4, v6",
          f"v_add_u32 v{vXA[ks]}, v3, v6", f"v_add_u32 v{vXB[ks]}, 0x10000, v{vXA[ks]}")
    A("v_lshlrev_b32 v3, 3, v4", f"v_bfe_u32 v5, v{vLANE}, 2, 2", "v_add_u32 v3, v3, v5",
      "v_mul_u32_u24 v3, 192, v3",
      f"v_bfe_u32 v5, v{vLANE}, 4, 1", "v_lshlrev_b32 v5, 5, v5", "v_add_u32 v3, v3, v5",
      f"v_and_b32 v5, 3, v{vLANE}", "v_lshlrev_b32 v5, 3, v5", "v_add_u32 v3, v3, v5",
      f"v_add_u32 v{vWA}, {WRING}, v3")
    take_tag(g)
    def rd_x(n):
        st, ks = divmod(n, 4)
        slot = st % NSLOT
        if slot < 4: A(f"ds_read_b128 {vr(XF[n & 1],4)}, v{vXA[ks]} offset:{slot*SLOT_X}")
        else:        A(f"ds_read_b128 {vr(XF[n & 1],4)}, v{vXB[ks]}")
    def rd_w(n, blk):
        st, ks = divmod(n, 4)
        slot = st % NSLOT
        for t in range(2):
            off = slot*SLOT_W + (16*ks + 4*t)*192 + blk*64
            A(f"ds_read_b64_tr_b16 {vr(WF[n & 1]+4*blk+2*t,2)}, v{vWA} offset:{off}")
    def mf(n, blk):
        b = n & 1
        c = "0" if n % 32 == 0 else None
        if n < 32 and blk == 2: A(mfma32(ACC[blk], XF[b], WF[b]+4*blk, c))
        else:                   A(mfma32(ACC[blk], WF[b]+4*blk, XF[b], c))
    stamp(A, 1)
    A("s_barrier")
    stamp(A, 2)
    rd_x(0); rd_w(0, 0); rd_w(0, 1); rd_w(0, 2)
    NK = 64
    for n in range(NK):
        more = n+1 < NK
        if n % 4 == 2 and n//4 + 1 < 16:
            A("s_barrier")
        if n == 44:
            A(f"s_lshl_b32 s{sT}, s{sN}, 6", f"s_lshl_b32 s{sT2}, s{sTB}, 2", f"s_add_u32 s{sT}, s{sT}, s{sT2}",
              f"s_add_u32 s{sT}, s{sT}, s{sW}", f"s_lshl_b32 s{sT}, s{sT}, 3", f"s_add_u32 s{sT}, s{sT}, 0x{WS_QF:x}",
              "s_waitcnt vmcnt(0)")
            flag_store(g, sT)
        if n == 52 or n == 60:
            skip = g.lab("nopoll")
            A(f"s_cmp_lg_u32 s{sW}, 0", f"s_cbranch_scc1 {skip}")
            A(f"s_lshr_b32 s{sI}, s{sH}, 1", f"s_lshl_b32 s{sI}, s{sI}, 9", f"s_add_u32 s{sI}, s{sI}, 0x{WS_QF:x}")
            if n == 52:
                poll_issue(g, sI)
            else:
                poll_check(g, sI)
            A.label(skip)
        A("s_waitcnt lgkmcnt(4)")
        mf(n, 0)
        if more: rd_x(n+1); rd_w(n+1, 0)
        A(f"s_waitcnt lgkmcnt({5 if more else 2})")
        mf(n, 1)
        if more: rd_w(n+1, 1)
        A(f"s_waitcnt lgkmcnt({5 if more else 0})")
        if not more: A("s_barrier")
        mf(n, 2)
        if more: rd_w(n+1, 2)
        if n == 31:
            stamp(A, 3)
            qkv_epilogue(g, ACC)
            stamp(A, 4)
    stamp(A, 5)
    ffn1_epilogue(g, ACC)

def qkv_epilogue(g, ACC):
    A = g.A
    T0 = 100
    A("s_nop 15")
    A(f"s_lshl_b32 s{sT}, s{sTB}, 2", f"s_add_u32 s{sT}, s{sT}, s{sW}",
      "s_mov_b32 s4, 0x3eb8aa3b",
      f"s_lshl_b32 s{sT2}, s{sN}, 17", f"s_lshl_b32 s{sT}, s{sT}, 10", f"s_add_u32 s{sT2}, s{sT2}, s{sT}")
    A(f"v_bfe_u32 v98, v{vLANE}, 4, 1", "v_lshlrev_b32 v98, 16, v98",
      f"v_lshrrev_b32 v99, 5, v{vLANE}", "v_lshlrev_b32 v99, 8, v99", "v_add_u32 v98, v98, v99",
      f"v_and_b32 v99, 15, v{vLANE}", "v_lshlrev_b32 v99, 4, v99", "v_add_u32 v98, v98, v99")
    for i in range(16):
        A(f"v_mul_f32 v{i}, s4, v{i}")
    k = 0
    for blk, base in ((1, WS_K), (0, WS_Q)):
        for hd in range(2):
            r = ACC[blk] + 8*hd
            d = T0 + 4*k; k += 1
            for i in range(4):
                A(f"v_cvt_pk_bf16_f32 v{d+i}, v{r+2*i}, v{r+2*i+1}")
            A(f"s_add_u32 s{sT}, s{sT2}, 0x{base + hd*65536:x}",
              f"buffer_store_dwordx4 {vr(d,4)}, v{vL16}, {S4(sWS)}, s{sT} offen sc1")
    for j in range(2):
        r = ACC[2] + 8*j
        d = T0 + 4*k; k += 1
        for i in range(4):
            A(f"v_cvt_pk_bf16_f32 v{d+i}, v{r+2*i}, v{r+2*i+1}")
        A(f"s_add_u32 s{sT}, s{sT2}, 0x{WS_V + j*512:x}",
          f"buffer_store_dwordx4 {vr(d,4)}, v98, {S4(sWS)}, s{sT} offen sc1")

def ffn1_epilogue(g, ACC):
    A = g.A
    done, pad = g.lab("f1done"), g.lab("f1pad")
    A(f"s_cmp_eq_u32 s{sN}, 15", f"s_cbranch_scc1 {done}")
    A("s_nop 15")
    A(f"s_lshl_b32 s{sT}, s{sTB}, 2", f"s_add_u32 s{sT}, s{sT}, s{sW}",
      f"s_mul_i32 s{sT2}, s{sT}, {HSTEPS*1024}", f"s_mul_i32 s{sT}, s{sN}, 6144",
      f"s_add_u32 s{sT2}, s{sT2}, s{sT}", f"s_add_u32 s{sT2}, s{sT2}, 0x{WS_H:x}",
      "s_mov_b32 s4, 0xbfb8aa3b")
    for blk in range(3):
        if blk == 1:
            A(f"s_cmp_eq_u32 s{sN}, 14", f"s_cbranch_scc1 {pad}")
        for half in range(2):
            q = ACC[blk] + 8*half
            for i in range(8): A(f"v_mul_f32 v{48+i}, s4, v{q+i}")
            for i in range(8): A(f"v_exp_f32 v{48+i}, v{48+i}")
            for i in range(8): A(f"v_add_f32 v{48+i}, 1.0, v{48+i}")
            for i in range(8): A(f"v_rcp_f32 v{48+i}, v{48+i}")
            for i in range(8): A(f"v_mul_f32 v{q+i}, v{q+i}, v{48+i}")
            d = 56 + 4*((2*blk+half) % 6)
            for i in range(4):
                A(f"v_cvt_pk_bf16_f32 v{d+i}, v{q+2*i}, v{q+2*i+1}")
            A(f"s_add_u32 s{sT}, s{sT2}, {(2*blk+half)*1024}",
              f"buffer_store_dwordx4 {vr(d,4)}, v{vL16}, {S4(sWS)}, s{sT} offen sc1")
    A(f"s_branch {done}")
    A.label(pad)
    for i in range(4): A(f"v_mov_b32 v{48+i}, 0")
    for st in (2, 3):
        A(f"s_add_u32 s{sT}, s{sT2}, {st*1024}",
          f"buffer_store_dwordx4 {vr(48,4)}, v{vL16}, {S4(sWS)}, s{sT} offen sc1")
    A.label(done)

S_ = [0, 16]; P_ = 32; O_ = 40; Q_ = 56; K_ = [60, 64]; V0_ = [68, 72]; V1_ = [76, 80]
vKA, vVA, vT0, vT1, vT2, vT3 = 84, 85, 86, 87, 88, 89
sHB, sOB, sLW, sLB = 96, 97, 98, 99
FLIP = 52

def attn_setup(g):
    A = g.A
    A(f"v_mov_b32 v{vKA}, v{vL16}",
      f"v_and_b32 v1, 15, v{vLANE}", "v_lshlrev_b32 v1, 4, v1",
      f"v_lshrrev_b32 v2, 5, v{vLANE}", "v_lshlrev_b32 v2, 8, v2", "v_add_u32 v1, v1, v2",
      f"v_add_u32 v{vVA}, {LDS_V}, v1")
    A(f"v_and_b32 v1, 31, v{vLANE}", "v_mov_b32 v2, 0", "v_mov_b32 v3, 0x3f803f80",
      "v_cmp_eq_u32 vcc, 16, v1", "s_nop 1", "v_cndmask_b32 v2, v2, v3, vcc",
      "v_cmp_eq_u32 vcc, 20, v1", "s_nop 1", "v_cndmask_b32 v2, v2, v3, vcc")
    for b in V0_ + V1_:
        for i in range(4): A(f"v_mov_b32 v{b+i}, v2")
    for i in range(16): A(f"v_mov_b32 v{O_+i}, 0")
    for i in range(4): A(f"v_mov_b32 v{P_+4+i}, 0")
    A(f"s_mov_b32 s{sMASK}, 0x0000ffff", f"s_mov_b32 s{sMASK+1}, 0x0000ffff")

def b_loader_setup(g):
    A = g.A
    lw = sE
    A(f"v_lshrrev_b32 v102, 3, v{vLANE}", f"s_lshl_b32 s{sT}, s{lw}, 4", f"v_add_u32 v102, s{sT}, v102",
      "v_lshlrev_b32 v102, 10, v102",
      f"v_bfe_u32 v103, v{vLANE}, 4, 1", "v_lshlrev_b32 v103, 2, v103", f"v_and_b32 v104, 7, v{vLANE}",
      "v_xor_b32 v103, v103, v104", "v_lshlrev_b32 v103, 4, v103", "v_add_u32 v102, v102, v103",
      f"s_lshl_b32 s{sT}, s{sFT}, 7", f"v_add_u32 v{vW0}, s{sT}, v102",
      f"v_add_u32 v{vW1}, 8192, v{vW0}")
    A(f"s_lshl_b32 s{sT}, s{sTT}, 1", f"s_lshr_b32 s{sT2}, s{lw}, 1", f"s_add_u32 s{sT}, s{sT}, s{sT2}",
      f"s_and_b32 s{sT2}, s{lw}, 1", f"s_lshl_b32 s{sT2}, s{sT2}, 11",
      f"s_mul_i32 s{sHB}, s{sT}, {HSTEPS*1024}", f"s_add_u32 s{sHB}, s{sHB}, s{sT2}", f"s_add_u32 s{sHB}, s{sHB}, 0x{WS_H:x}",
      f"s_lshl_b32 s{sOB}, s{sT}, 15", f"s_add_u32 s{sOB}, s{sOB}, s{sT2}", f"s_add_u32 s{sOB}, s{sOB}, 0x{WS_O:x}",
      f"s_lshl_b32 s{sLW}, s{lw}, 11", f"s_add_u32 s{sLB}, s{sLW}, 8192",
      f"s_mov_b32 s{sI}, 0", f"s_mov_b32 s{sL}, {8*SLOTB}")

def b_issue(g):
    A = g.A
    wo, done = g.lab("iwo"), g.lab("idone")
    def four(srdW):
        A(f"s_add_u32 m0, s{sL}, s{sLW}", f"s_add_u32 s{sT}, s{sBo}, 1024",
          f"buffer_load_dwordx4 v{vW0}, {S4(srdW)}, s{sA} offen lds",
          "s_add_u32 m0, m0, 1024", "s_nop 0",
          f"buffer_load_dwordx4 v{vW1}, {S4(srdW)}, s{sA} offen lds",
          f"s_add_u32 m0, s{sL}, s{sLB}", "s_nop 0",
          f"buffer_load_dwordx4 v{vL16}, {S4(sWS)}, s{sBo} offen sc1 lds",
          "s_add_u32 m0, m0, 1024", "s_nop 0",
          f"buffer_load_dwordx4 v{vL16}, {S4(sWS)}, s{sT} offen sc1 lds")
    A(f"s_cmp_lt_u32 s{sI}, {NF2}", f"s_cbranch_scc0 {wo}")
    A(f"s_lshl_b32 s{sA}, s{sI}, 16", f"s_lshl_b32 s{sBo}, s{sI}, 12", f"s_add_u32 s{sBo}, s{sBo}, s{sHB}")
    four(sW2)
    A(f"s_branch {done}")
    A.label(wo)
    A(f"s_sub_u32 s{sT2}, s{sI}, {NF2}",
      f"s_lshl_b32 s{sA}, s{sT2}, 16", f"s_lshl_b32 s{sBo}, s{sT2}, 12", f"s_add_u32 s{sBo}, s{sBo}, s{sOB}",
      f"s_cmp_lt_u32 s{sT2}, {NWO}", f"s_cselect_b32 s{sBo}, s{sBo}, 0x40000000")
    four(sWO)
    A.label(done)
    A(f"s_add_u32 s{sI}, s{sI}, 1", f"s_add_u32 s{sL}, s{sL}, {SLOTB}",
      f"s_cmp_ge_u32 s{sL}, {NSB*SLOTB}", f"s_cselect_b32 s{sL}, 0, s{sL}")

def attention(g):
    A = g.A
    opt = g.opt
    attn_setup(g)
    skip = g.lab("nowait")
    A(f"s_cmp_lt_u32 s{sW}, 4", f"s_cbranch_scc1 {skip}", "s_waitcnt vmcnt(0)")
    A.label(skip)
    A("s_barrier")
    stamp(A, 6)
    A(f"s_lshl_b32 s{sT}, s{sW}, 10", f"s_add_u32 s{sT}, s{sT}, {LDS_Q}", f"v_add_u32 v1, s{sT}, v{vL16}",
      f"ds_read_b128 {vr(Q_,4)}, v1",
      f"ds_read_b128 {vr(K_[0],4)}, v{vKA}",
      f"ds_read_b128 {vr(K_[1],4)}, v{vKA} offset:1024",
      f"s_mov_b64 exec, s[{sMASK}:{sMASK+1}]",
      f"ds_read_b128 {vr(V0_[0],4)}, v{vVA}",
      "s_mov_b64 exec, -1")
    px, pd = g.lab("px"), g.lab("pd")
    A(f"s_cmp_lt_u32 s{sW}, 4", f"s_cbranch_scc1 {px}", "s_setprio 1", f"s_branch {pd}")
    A.label(px); A("s_setprio 2"); A.label(pd)
    A("s_waitcnt lgkmcnt(0)", mfma32(S_[0], K_[0], Q_, "0"), f"s_mov_b32 s{sC}, 0")
    loop = g.lab("aloop")
    A.label(loop)
    n1, n4, n5 = g.lab("n1"), g.lab("n4"), g.lab("n5")
    A(f"s_cmp_lt_u32 s{sW}, 4", f"s_cbranch_scc0 {n4}")
    A(f"s_cmp_eq_u32 s{sC}, 1", f"s_cbranch_scc0 {n5}", f"s_cmp_eq_u32 s{sN}, 15", f"s_cbranch_scc1 {n5}")
    A(f"s_lshl_b32 s{sT}, s{sTB}, 2", f"s_add_u32 s{sT}, s{sT}, s{sW}", f"s_lshl_b32 s{sT}, s{sT}, 4",
      f"s_add_u32 s{sT}, s{sT}, s{sN}", f"s_lshl_b32 s{sT}, s{sT}, 3", f"s_add_u32 s{sT}, s{sT}, 0x{WS_FF:x}",
      "s_waitcnt vmcnt(0)")
    flag_store(g, sT)
    A(f"s_branch {n5}")
    A.label(n4)
    n4b = g.lab("n4b")
    A(f"s_cmp_eq_u32 s{sC}, 4", f"s_cbranch_scc0 {n4b}")
    A(f"s_lshl_b32 s{sBo}, s{sTT}, 8", f"s_add_u32 s{sBo}, s{sBo}, 0x{WS_FF:x}")
    poll_issue(g, sBo)
    A(f"s_branch {n5}")
    A.label(n4b)
    A(f"s_cmp_eq_u32 s{sC}, 5", f"s_cbranch_scc0 {n5}")
    A("s_mov_b32 s6, 0x80008000", "s_mov_b32 s7, -1")
    poll_check(g, sBo, ignore=6)
    b_loader_setup(g)
    b_issue(g); b_issue(g)
    A.label(n5)
    for tt in range(8):
        cur, nxt = tt & 1, (tt & 1) ^ 1
        s = S_[cur]
        e = lambda i: f"v_exp_f32 v{s+i}, v{s+i}"
        c = lambda i: f"v_cvt_pk_bf16_f32 v{P_+i}, v{s+2*i}, v{s+2*i+1}"
        if tt == FLIP % 8:
            nf = g.lab("nf")
            A(f"s_cmp_lg_u32 s{sC}, {FLIP//8}", f"s_cbranch_scc1 {nf}",
              f"s_cmp_ge_u32 s{sW}, 4", f"s_cbranch_scc1 {nf}", "s_setprio 0")
            A.label(nf)
        A("s_waitcnt lgkmcnt(0)")
        A(mfma32(S_[nxt], K_[nxt], Q_, "0"))
        A(f"ds_read_b128 {vr(K_[cur],4)}, v{vKA} offset:{(tt+2)*1024}")
        A(e(0), e(1))
        A(f"s_mov_b64 exec, s[{sMASK}:{sMASK+1}]",
          f"ds_read_b128 {vr(V0_[nxt],4)}, v{vVA} offset:{(tt+1)*1024}",
          f"ds_read_b128 {vr(V1_[cur],4)}, v{vVA} offset:{tt*1024+512}",
          "s_mov_b64 exec, -1")
        A(e(2), e(3), c(0), c(1))
        A(mfma32(O_, V1_[nxt], P_+4))
        A(e(4), e(5), e(6), e(7), c(2), c(3), e(8), e(9))
        A(mfma32(O_, V0_[cur], P_))
        A(e(10), e(11), c(4), c(5), e(12), e(13), e(14), e(15), c(6), c(7))
    A(f"v_add_u32 v{vKA}, 8192, v{vKA}", f"v_add_u32 v{vVA}, 8192, v{vVA}",
      f"s_add_u32 s{sC}, s{sC}, 1", f"s_cmp_lt_u32 s{sC}, 8", f"s_cbranch_scc1 {loop}")
    A("s_waitcnt lgkmcnt(0)", mfma32(O_, V1_[1], P_+4), "s_setprio 0", "s_nop 15", "s_nop 7")
    stamp(A, 7)
    ok, slow = g.lab("ok"), g.lab("slow")
    A(f"v_mul_f32 v{vT0}, 0, v{O_}")
    for i in range(1, 8):
        A(f"v_fma_f32 v{vT0}, v{O_+i}, 0, v{vT0}")
    A("s_mov_b32 s4, 0x1f800000", "s_mov_b32 s5, 0x5f800000",
      f"v_cmp_eq_f32 vcc, 0, v{vT0}",
      f"v_cmp_le_f32 s[6:7], s4, v{O_+8}", "s_nop 1", "s_and_b64 vcc, vcc, s[6:7]",
      f"v_cmp_ge_f32 s[6:7], s5, v{O_+8}", "s_nop 1", "s_and_b64 vcc, vcc, s[6:7]",
      "s_cmp_eq_u64 vcc, -1", f"s_cbranch_scc0 {slow}")
    if 'forceslow' in opt: A(f"s_branch {slow}")
    A.label(ok)
    A(f"v_rcp_f32 v{vT0}, v{O_+8}", "s_nop 0")
    for i in range(8): A(f"v_mul_f32 v{O_+i}, v{O_+i}, v{vT0}")
    for i in range(4): A(f"v_cvt_pk_bf16_f32 v{P_+i}, v{O_+2*i}, v{O_+2*i+1}")
    A(f"s_lshl_b32 s{sT}, s{sQB}, 3", f"s_add_u32 s{sT}, s{sT}, s{sW}",
      f"s_lshl_b32 s{sT3}, s{sT}, 5", f"s_add_u32 s{sT3}, s{sT3}, s{sH}", f"s_lshl_b32 s{sT3}, s{sT3}, 3",
      f"s_add_u32 s{sC}, s{sT3}, 0x{WS_OF:x}",
      f"s_lshl_b32 s{sT}, s{sT}, 15",
      f"s_lshl_b32 s{sT2}, s{sH}, 10", f"s_add_u32 s{sT}, s{sT}, s{sT2}", f"s_add_u32 s{sT}, s{sT}, 0x{WS_O:x}",
      f"buffer_store_dwordx4 {vr(P_,4)}, v{vL16}, {S4(sWS)}, s{sT} offen sc1")
    return slow, ok

def attention_slow(g, slow, ok):
    A = g.A
    A.label(slow)
    vM, vMN, vA_, vB_ = vT0, vT1, vT2, vT3
    s = S_[0]
    A(f"v_subrev_u32 v{vKA}, {65536}, v{vKA}", f"v_subrev_u32 v{vVA}, {65536}, v{vVA}",
      f"v_mov_b32 v{vM}, 0xff800000", f"s_mov_b32 s{sC}, 0")
    for i in range(16): A(f"v_mov_b32 v{O_+i}, 0")
    loop = g.lab("sloop")
    A.label(loop)
    A(f"ds_read_b128 {vr(K_[0],4)}, v{vKA}",
      f"s_mov_b64 exec, s[{sMASK}:{sMASK+1}]",
      f"ds_read_b128 {vr(V0_[0],4)}, v{vVA}",
      f"ds_read_b128 {vr(V1_[0],4)}, v{vVA} offset:512",
      "s_mov_b64 exec, -1", "s_waitcnt lgkmcnt(0)",
      mfma32(s, K_[0], Q_, "0"), "s_nop 15", "s_nop 7")
    A(f"v_max3_f32 v{vMN}, v{s}, v{s+1}, v{vM}")
    for i in range(2, 16, 2):
        A(f"v_max3_f32 v{vMN}, v{s+i}, v{s+i+1}, v{vMN}")
    A(f"v_mov_b32 v{vA_}, v{vMN}", f"v_mov_b32 v{vB_}, v{vMN}", "s_nop 1",
      f"v_permlane32_swap_b32 v{vA_}, v{vB_}", "s_nop 1",
      f"v_max_f32 v{vMN}, v{vA_}, v{vB_}",
      f"v_sub_f32 v{vA_}, v{vM}, v{vMN}", f"v_exp_f32 v{vA_}, v{vA_}", f"v_mov_b32 v{vM}, v{vMN}")
    for i in range(16): A(f"v_sub_f32 v{s+i}, v{s+i}, v{vMN}")
    for i in range(16): A(f"v_exp_f32 v{s+i}, v{s+i}")
    for i in range(9): A(f"v_mul_f32 v{O_+i}, v{O_+i}, v{vA_}")
    for i in range(8): A(f"v_cvt_pk_bf16_f32 v{P_+i}, v{s+2*i}, v{s+2*i+1}")
    A("s_nop 1", mfma32(O_, V0_[0], P_), mfma32(O_, V1_[0], P_+4), "s_nop 15", "s_nop 7")
    A(f"v_add_u32 v{vKA}, 1024, v{vKA}", f"v_add_u32 v{vVA}, 1024, v{vVA}",
      f"s_add_u32 s{sC}, s{sC}, 1", f"s_cmp_lt_u32 s{sC}, 64", f"s_cbranch_scc1 {loop}")
    A(f"s_branch {ok}")

def phase_b(g):
    A = g.A
    cons = g.lab("bcons")
    A(f"s_cmp_lt_u32 s{sW}, 4", f"s_cbranch_scc1 {cons}")
    A("s_waitcnt vmcnt(1)", "s_barrier")
    b_issue(g); b_issue(g); b_issue(g)
    A("s_waitcnt vmcnt(12)")
    flag_store(g, sC)
    A("s_barrier")
    b_issue(g)
    A("s_waitcnt vmcnt(13)", "s_barrier")
    b_issue(g)
    A("s_waitcnt vmcnt(13)", "s_barrier")
    b_issue(g)
    A("s_waitcnt vmcnt(13)", "s_barrier")
    b_issue(g)
    A(f"s_mov_b32 s{sC}, 5")
    lp = g.lab("bl")
    A.label(lp)
    A("s_waitcnt vmcnt(12)", "s_barrier")
    b_issue(g)
    A(f"s_add_u32 s{sC}, s{sC}, 1", f"s_cmp_lt_u32 s{sC}, {NF2+NWO+1}", f"s_cbranch_scc1 {lp}")
    stamp(A, 9)
    stamp_flush(A, 0)
    A("s_endpgm")
    A.label(cons)
    ACCB, ACCA = 0, 16
    FR = [32, 64]
    vWA, vBA, vWB, vBB, vG, vT = 96, 97, 98, 99, 100, 101
    A(f"v_lshrrev_b32 v104, 5, v{vLANE}", "v_lshlrev_b32 v104, 2, v104", f"v_bfe_u32 v105, v{vLANE}, 2, 2",
      "v_add_u32 v104, v104, v105", "v_lshlrev_b32 v104, 7, v104",
      f"s_and_b32 s{sT2}, s{sW}, 1",
      f"v_bfe_u32 v105, v{vLANE}, 3, 1", f"v_xor_b32 v105, s{sT2}, v105", "v_lshlrev_b32 v105, 6, v105", "v_add_u32 v104, v104, v105",
      f"v_bfe_u32 v105, v{vLANE}, 4, 1", "v_lshlrev_b32 v105, 5, v105", "v_add_u32 v104, v104, v105",
      f"v_and_b32 v105, 3, v{vLANE}", "v_lshlrev_b32 v105, 3, v105", f"v_add_u32 v{vWB}, v104, v105")
    A(f"s_lshr_b32 s{sT2}, s{sW}, 1", f"s_lshl_b32 s{sT2}, s{sT2}, 12", f"s_add_u32 s{sT2}, s{sT2}, 8192",
      f"v_add_u32 v{vBB}, s{sT2}, v{vL16}",
      f"s_mov_b32 s{sL}, {8*SLOTB}")
    def reads(b):
        A(f"v_add_u32 v{vWA}, s{sL}, v{vWB}", f"v_add_u32 v{vBA}, s{sL}, v{vBB}",
          f"s_add_u32 s{sL}, s{sL}, {SLOTB}", f"s_cmp_ge_u32 s{sL}, {NSB*SLOTB}", f"s_cselect_b32 s{sL}, 0, s{sL}")
        for ks in range(4):
            for t in range(2):
                A(f"ds_read_b64_tr_b16 {vr(FR[b]+8*ks+2*t,2)}, v{vWA} offset:{(16*ks+8*t)*128}")
            A(f"ds_read_b128 {vr(FR[b]+8*ks+4,4)}, v{vBA} offset:{ks*1024}")
    def body(b, acc, first=False):
        A("s_waitcnt lgkmcnt(0)", "s_barrier")
        reads(b ^ 1)
        for ks in range(4):
            A(mfma32(acc, FR[b]+8*ks, FR[b]+8*ks+4, "0" if (first and ks == 0) else None))
    A("s_barrier")
    reads(0)
    body(0, ACCB, first=True); body(1, ACCB)
    A("s_waitcnt vmcnt(0)")
    flag_store(g, sC)
    A(f"s_mov_b32 s{sC}, 2")
    lf = g.lab("cf")
    A.label(lf)
    n1, n2 = g.lab("p1"), g.lab("p2")
    A(f"s_cmp_lg_u32 s{sW}, 0", f"s_cbranch_scc1 {n2}",
      f"s_cmp_eq_u32 s{sC}, 12", f"s_cbranch_scc0 {n1}",
      f"s_lshl_b32 s{sI}, s{sTT}, 9", f"s_add_u32 s{sI}, s{sI}, 0x{WS_OF:x}")
    poll_issue(g, sI)
    A(f"s_branch {n2}")
    A.label(n1)
    A(f"s_cmp_eq_u32 s{sC}, 16", f"s_cbranch_scc0 {n2}")
    poll_check(g, sI)
    A.label(n2)
    body(0, ACCB); body(1, ACCB)
    A(f"s_add_u32 s{sC}, s{sC}, 2", f"s_cmp_lt_u32 s{sC}, {NF2}", f"s_cbranch_scc1 {lf}")
    stamp(A, 8)
    A(f"s_lshl_b32 s{sT}, s{sTT}, 1", f"s_lshr_b32 s{sT2}, s{sW}, 1", f"s_add_u32 s{sT}, s{sT}, s{sT2}",
      f"s_lshl_b32 s{sT}, s{sT}, 5",
      f"v_and_b32 v104, 31, v{vLANE}", f"v_add_u32 v104, s{sT}, v104",
      f"v_lshlrev_b32 v{vT}, 10, v104",
      "v_lshlrev_b32 v104, 2, v104", f"v_add_u32 v104, 0x{WS_G:x}, v104",
      f"buffer_load_dword v{vG}, v104, {S4(sWS)}, 0 offen sc1")
    body(0, ACCA, first=True); body(1, ACCA)
    A(f"s_mov_b32 s{sC}, 2")
    lo = g.lab("co")
    A.label(lo)
    body(0, ACCA); body(1, ACCA)
    A(f"s_add_u32 s{sC}, s{sC}, 2", f"s_cmp_lt_u32 s{sC}, {NWO}", f"s_cbranch_scc1 {lo}")
    stamp(A, 9)
    A("s_waitcnt vmcnt(0) lgkmcnt(0)", "s_nop 15", "s_nop 7")
    for i in range(16): A(f"v_sub_f32 v{ACCA+i}, v{ACCA+i}, v{ACCB+i}")
    for i in range(16): A(f"v_fma_f32 v{ACCB+i}, v{vG}, v{ACCA+i}, v{ACCB+i}")
    for i in range(8): A(f"v_cvt_pk_bf16_f32 v{32+i}, v{ACCB+2*i}, v{ACCB+2*i+1}")
    A(f"s_lshl_b32 s{sT}, s{sFT}, 7", f"s_and_b32 s{sT2}, s{sW}, 1", f"s_lshl_b32 s{sT2}, s{sT2}, 6",
      f"s_add_u32 s{sT}, s{sT}, s{sT2}",
      f"v_lshrrev_b32 v104, 5, v{vLANE}", "v_lshlrev_b32 v104, 4, v104", f"v_add_u32 v{vT}, v{vT}, v104")
    for p in range(2):
        r = 32 + 4*p
        A("s_nop 1", f"v_permlane32_swap_b32 v{r}, v{r+2}", f"v_permlane32_swap_b32 v{r+1}, v{r+3}")
    for p in range(2):
        r = 32 + 4*p
        A(f"buffer_store_dwordx4 {vr(r,4)}, v{vT}, {S4(sOUT)}, s{sT} offen offset:{32*p}")
    ne = g.lab("noep")
    A(f"s_or_b32 s{sT}, s2, s{sW}", f"s_cmp_lg_u32 s{sT}, 0", f"s_cbranch_scc1 {ne}",
      f"s_mov_b32 s{sT}, 0x{WS_EPOCH:x}")
    flag_store(g, sT)
    A.label(ne)
    stamp(A, 10)
    if STAMPS: A("s_waitcnt vmcnt(0)")
    stamp(A, 11)
    stamp_flush(A, 0)

def gen_mega(opt=()):
    g = G(opt)
    A = g.A
    kernel_header(A, KN)
    prologue(g)
    loader_qf(g)
    loader_kv(g)
    join = g.lab("join")
    A(f"s_branch {join}")
    A.label(f"{KN}_cons")
    consumer_qf(g)
    A.label(join)
    slow, ok = attention(g)
    phase_b(g)
    A.label(f"{KN}_exit")
    A("s_endpgm")
    attention_slow(g, slow, ok)
    code = A.text()
    hdr = HEADER + f"; @launch grid=(256,1,1) block=(512,1,1) lds={LDS_TOTAL}\n"
    return hdr + '.amdgcn_target "amdgcn-amd-amdhsa--gfx950"\n.text\n' + code + '.section .rodata,"a"\n' + descriptor(KN, 256)

HEADER = """; Kernarg layout for this problem (80 bytes, ptrs only, base s[0:1]):
"""
if __name__ == "__main__":
    import sys
    opt = sys.argv[2].split(",") if len(sys.argv) > 2 else ()
    open(sys.argv[1], "w").write(gen_mega(opt))
```
